```python
import torch

def _softmax(x, axis=-1):
    return torch.softmax(x, dim=axis)
def _gelu(x):
    return torch.nn.functional.gelu(x, approximate="tanh")
def _silu(x):
    return torch.nn.functional.silu(x)
def _sigmoid(x):
    return torch.sigmoid(x)
def _layernorm(x, axis=-1, eps=1e-5):
    m = x.mean(dim=axis, keepdim=True)
    v = x.var(dim=axis, keepdim=True, unbiased=False)
    return (x - m) / torch.sqrt(v + eps)
def _scatter_add(tgt, idx, src, axis=0):
    return tgt.clone().index_add_(axis, idx, src)
def _segment_sum(src, seg, n):
    out = torch.zeros((n,) + src.shape[1:], dtype=src.dtype)
    return out.index_add_(0, seg, src)
def _pad(x, pw):
    flat = tuple(v for pair in reversed(pw) for v in pair)
    return torch.nn.functional.pad(x, flat)

kernel_name = 'gated_mix__softmax_full_mha__glu_gated_geglu__prompt'

def setup_inputs():

    _w = (lambda a: (lambda t: t.to(torch.bfloat16) if t.is_floating_point() else t)(torch.as_tensor(a)))
    def _A_setup():
        B, S, D = 1, 2048, 1024
        return {
            "x": _w((lambda *s: torch.randn(*s, dtype=torch.bfloat16) * 0.05)(B, S, D)),
            "wqkv": _w((lambda *s: torch.randn(*s, dtype=torch.bfloat16) * 0.4)(D, 3 * D)),
            "wo": _w((lambda *s: torch.randn(*s, dtype=torch.bfloat16) * 0.05)(D, D)),
        }
    _A_in = _A_setup()

    def _B_setup():
        B, S, Dm, Df = 1, 2048, 1024, 3584
        return {
            "x": _w((lambda *s: torch.randn(*s, dtype=torch.bfloat16) * 0.05)(B, S, Dm)),
            "w_gate": _w((lambda *s: torch.randn(*s, dtype=torch.bfloat16) * 1.6)(Dm, Df) * (Dm ** -0.5)),
            "w_up": _w((lambda *s: torch.randn(*s, dtype=torch.bfloat16) * 1.6)(Dm, Df) * (Dm ** -0.5)),
            "w_down": _w((lambda *s: torch.randn(*s, dtype=torch.bfloat16) * 1.6)(Df, Dm) * (Df ** -0.5)),
        }
    _B_in = _B_setup()

    return {
        "A_x": _A_in["x"],
        "A_wqkv": _A_in["wqkv"],
        "A_wo": _A_in["wo"],
        "B_x": _B_in["x"],
        "B_w_gate": _B_in["w_gate"],
        "B_w_up": _B_in["w_up"],
        "B_w_down": _B_in["w_down"],
        "gate_w": _w((lambda *s: torch.randn(*s, dtype=torch.bfloat16) * 0.05)(1024) * 16.0),
    }

def reference(A_x, A_wqkv, A_wo, B_x, B_w_gate, B_w_up, B_w_down, gate_w):
    def _A_ref(x, wqkv, wo):
        B, S, D = x.shape
        H = 32; Dh = D // H
        qkv = (lambda x, *d: x.permute(*d))((x @ wqkv).reshape(B, S, 3, H, Dh), 2, 0, 3, 1, 4)
        q, k, v = qkv[0], qkv[1], qkv[2]
        scale = Dh ** -0.5
        scores = torch.einsum("bhqd,bhkd->bhqk", q, k) * scale
        p = _softmax(scores, axis=-1)
        o = torch.einsum("bhqk,bhkd->bhqd", p, v)
        return (lambda x, *d: x.permute(*d))(o, 0, 2, 1, 3).reshape(B, S, D) @ wo

    def _B_ref(x, w_gate, w_up, w_down):
        g = torch.einsum("bsd,df->bsf", x, w_gate)
        u = torch.einsum("bsd,df->bsf", x, w_up)
        h = _gelu(g) * u
        return torch.einsum("bsf,fd->bsd", h, w_down)

    x = A_x
    g = _sigmoid((x * gate_w).sum(-1, keepdims=True))
    a = _A_ref(x, A_wqkv, A_wo)
    b = _B_ref(x, B_w_gate, B_w_up, B_w_down)
    return g * a + (1 - g) * b
```

```python
import re


class Emit:
    def __init__(self):
        self.lines = []

    def __call__(self, s=""):
        for l in s.split("\n"):
            l = l.strip()
            if l:
                self.lines.append(l)

    def label(self, name):
        self.lines.append(name + ":")

    def text(self):
        out = []
        for l in self.lines:
            if l.endswith(":") or l.startswith("."):
                out.append(l)
            else:
                out.append("    " + l)
        return "\n".join(out) + "\n"


def vr(a, n=1):
    return f"v{a}" if n == 1 else f"v[{a}:{a+n-1}]"


def ar(a, n=1):
    return f"a{a}" if n == 1 else f"a[{a}:{a+n-1}]"


def sr(a, n=1):
    return f"s{a}" if n == 1 else f"s[{a}:{a+n-1}]"


def weave(main, fill):
    out = list(fill.get(-1, []))
    for i, m in enumerate(main):
        out.append(m)
        out += fill.get(i, [])
    return out


_reg = re.compile(r"^(-|\|)?(v|a|s)(?:(\d+)|\[(\d+):(\d+)\])\|?$")


def regs_of(tok):
    tok = tok.strip()
    tok = re.sub(r"^abs\((.*)\)$", r"\1", tok)
    tok = re.sub(r"^neg\((.*)\)$", r"\1", tok)
    if tok in ("vcc", "vcc_lo", "vcc_hi"):
        return {("s", 106), ("s", 107)}
    if tok in ("exec", "exec_lo", "exec_hi"):
        return {("s", 126), ("s", 127)}
    if tok == "m0":
        return {("s", 124)}
    m = _reg.match(tok)
    if not m:
        return set()
    f = m.group(2)
    if m.group(3) is not None:
        return {(f, int(m.group(3)))}
    return {(f, i) for i in range(int(m.group(4)), int(m.group(5)) + 1)}


TRANS = ("v_exp_f32", "v_log_f32", "v_rcp_f32", "v_rsq_f32", "v_sqrt_f32", "v_sin_f32", "v_cos_f32")


class Ins:
    def __init__(self, line):
        self.line = line
        line = line.split(";")[0].strip()
        parts = line.split(None, 1)
        self.op = parts[0]
        rest = parts[1] if len(parts) > 1 else ""
        ops = [o.strip() for o in rest.split(",")] if rest else []
        self.mods = ""
        if ops:
            last = ops[-1].split(None, 1)
            if last:
                ops[-1] = last[0]
                self.mods = last[1] if len(last) > 1 else ""
        self.ops = ops
        op = self.op
        self.w = set()
        self.r = set()
        self.kind = "other"
        self.srcc = set()
        self.ab = set()
        self.passes = 0
        self.states = 1
        R = regs_of
        if op == "s_nop":
            self.states = int(ops[0], 0) + 1
            self.kind = "nop"
        elif op.startswith("v_mfma"):
            self.kind = "mfma"
            self.w = R(ops[0])
            self.ab = R(ops[1]) | R(ops[2])
            self.srcc = R(ops[3])
            self.r = self.ab | self.srcc
            self.passes = 8 if "32x32x16" in op else 4
        elif op.startswith("v_cmp"):
            self.kind = "valu"
            self.w = R(ops[0])
            for o in ops[1:]:
                self.r |= R(o)
            if op.startswith("v_cmpx"):
                self.w |= R("exec")
        elif op.startswith("v_readfirstlane") or op.startswith("v_readlane"):
            self.kind = "valu"
            self.w = R(ops[0])
            for o in ops[1:]:
                self.r |= R(o)
        elif op.startswith("v_permlane"):
            self.kind = "valu"
            self.w = R(ops[0]) | R(ops[1])
            self.r = R(ops[0]) | R(ops[1])
        elif op.startswith("v_"):
            self.kind = "valu"
            self.w = R(ops[0])
            start = 1
            if "_co_" in op or op.startswith("v_div_scale") or op.startswith("v_mad_u64"):
                self.w |= R(ops[1])
                start = 2
            for o in ops[start:]:
                self.r |= R(o)
            if op.startswith("v_fmac") or op.startswith("v_dot2c") or "dpp" in op or "row_" in self.mods or "quad_perm" in self.mods:
                self.r |= R(ops[0])
            if op.startswith("v_cndmask") and len(ops) == 3:
                self.r |= R("vcc")
        elif op.startswith("ds_read") or op.startswith("ds_bpermute") or op.startswith("ds_swizzle"):
            self.kind = "ds"
            self.w = R(ops[0])
            for o in ops[1:]:
                self.r |= R(o)
        elif op.startswith("ds_"):
            self.kind = "ds"
            for o in ops:
                self.r |= R(o)
        elif op.startswith("buffer_load") or op.startswith("global_load"):
            self.kind = "vmem"
            if "lds" in self.mods.split() or "_lds_" in op:
                for o in ops:
                    self.r |= R(o)
                self.r |= R("m0")
                self.lds_dma = True
            else:
                self.w = R(ops[0])
                for o in ops[1:]:
                    self.r |= R(o)
        elif op.startswith("buffer_store") or op.startswith("global_store") or op.startswith("buffer_atomic") or op.startswith("global_atomic"):
            self.kind = "vmem"
            for o in ops:
                self.r |= R(o)
            self.store_data = R(ops[0]) if op.startswith("buffer") else R(ops[1])
            self.wide = op.endswith("x3") or op.endswith("x4")
        elif op.startswith("s_"):
            self.kind = "salu"
            if op.startswith(("s_cmp", "s_cbranch", "s_branch", "s_waitcnt", "s_barrier", "s_endpgm", "s_setprio", "s_sleep", "s_bitcmp")):
                for o in ops:
                    self.r |= R(o)
            else:
                if ops:
                    self.w = R(ops[0])
                for o in ops[1:]:
                    self.r |= R(o)
                if "saveexec" in op:
                    self.w |= R("exec")
        self.dpp = "row_" in self.mods or "quad_perm" in self.mods or "_dpp" in op
        self.trans = op.replace("_e32", "").replace("_e64", "") in TRANS


def check_seq(seq, report):
    n = len(seq)
    for i, p in enumerate(seq):
        if p.kind in ("nop", "other"):
            continue
        dist = 0
        for j in range(i + 1, min(n, i + 24)):
            c = seq[j]
            need = 0
            vw = {r for r in p.w if r[0] in "va"}
            sw = {r for r in p.w if r[0] == "s"}
            if p.kind == "valu":
                if c.kind == "mfma" and vw & c.r:
                    need = max(need, 2)
                if c.kind == "valu" and c.dpp and vw & c.r:
                    need = max(need, 2)
                if c.op.startswith("v_permlane") and vw & c.r:
                    need = max(need, 2)
                if (c.op.startswith("v_readfirstlane") or c.op.startswith("v_readlane")) and vw & c.r:
                    need = max(need, 1)
                if p.trans and c.kind == "valu" and not c.trans and vw & c.r:
                    need = max(need, 1)
                if p.trans and c.kind in ("vmem", "ds") and vw & c.r:
                    need = max(need, 1)
                if sw & c.r:
                    if c.kind == "vmem":
                        need = max(need, 5)
                    elif c.kind == "valu":
                        need = max(need, 4 if c.op.startswith(("v_readlane", "v_writelane")) else 2)
                    elif c.kind == "salu":
                        need = max(need, 1)
                if ("s", 126) in sw:
                    if c.kind == "mfma":
                        need = max(need, 4)
                    if c.dpp:
                        need = max(need, 5)
            if p.kind == "salu":
                if ("s", 124) in sw and getattr(c, "lds_dma", False):
                    need = max(need, 1)
            if p.kind == "mfma":
                big = {4: 8, 8: 12}[p.passes]
                if c.kind == "mfma":
                    if p.w & c.ab:
                        need = max(need, big)
                    if p.w & c.srcc:
                        if not (p.w == c.srcc and p.passes == c.passes):
                            need = max(need, {4: 6, 8: 10}[p.passes])
                    elif p.w & c.w and not (p.w & c.srcc):
                        if p.passes != c.passes:
                            need = max(need, big)
                elif c.kind in ("valu", "vmem", "ds"):
                    if p.w & (c.r | c.w):
                        need = max(need, big)
                if c.kind == "valu" and p.srcc & c.w:
                    need = max(need, {4: 3, 8: 7}[p.passes])
            if p.kind == "vmem" and getattr(p, "wide", False):
                if p.store_data & c.w:
                    need = max(need, 2 if c.kind == "valu" else 1)
            if need > dist:
                report(f"hazard: need {need} have {dist}: [{p.line}] -> [{c.line}]")
            dist += c.states
            if dist >= 21:
                break


def check_text(text):
    lines = []
    labels = {}
    for l in text.split("\n"):
        l = l.split(";")[0].strip()
        if not l or l.startswith("."):
            continue
        if l.endswith(":"):
            labels[l[:-1]] = len(lines)
            continue
        lines.append(l)
    ins = [Ins(l) for l in lines]
    msgs = []
    check_seq(ins, msgs.append)
    for i, x in enumerate(ins):
        if x.op.startswith("s_cbranch") or x.op == "s_branch":
            t = labels.get(x.ops[0])
            if t is None:
                continue
            seq = ins[max(0, i - 24):i + 1] + ins[t:t + 24]
            m2 = []
            check_seq(seq, m2.append)
            for m in m2:
                if m not in msgs:
                    msgs.append("(edge) " + m)
    return msgs
```

```python
import sys, importlib
sys.path.insert(0, "work")
from asmlib import check_text
NAME = "gated_mix__softmax_full_mha__glu_gated_geglu__prompt"
def build(mods, path):
    ref = open(f"cdna_kernels/{NAME}.s.ref").read().split("\n")
    head = [l for l in ref if l.startswith(";") and "@launch" not in l and "Override launch" not in l and "grid=ceil" not in l]
    ks = [importlib.import_module(m).gen() for m in mods]
    out = list(head)
    for t, d in ks:
        out.append(f"; @launch kernel={d['name']} grid=({d['grid']},1,1) block=({d['block']},1,1) lds={d['lds']}")
    out.append('.amdgcn_target "amdgcn-amd-amdhsa--gfx950"')
    nh = 0
    for t, d in ks:
        msgs = check_text(t)
        for m in msgs[:40]:
            print(d["name"], m)
        nh += len(msgs)
        out += [".text", f".globl {d['name']}", ".p2align 8", f".type {d['name']},@function", f"{d['name']}:", t]
    out += ["code_end:", "    s_endpgm", '.section .rodata,"a"']
    for t, d in ks:
        acc = (d["vgpr"] + 3) // 4 * 4
        nfv = acc + d["agpr"] if d["agpr"] else d["vgpr"]
        out += [".p2align 6", f".amdhsa_kernel {d['name']}", f"  .amdhsa_next_free_vgpr {nfv}",
                f"  .amdhsa_next_free_sgpr {d['sgpr']}", f"  .amdhsa_accum_offset {acc}",
                "  .amdhsa_group_segment_fixed_size 0", "  .amdhsa_kernarg_size 88", "  .amdhsa_user_sgpr_count 2",
                "  .amdhsa_user_sgpr_kernarg_segment_ptr 1", "  .amdhsa_system_sgpr_workgroup_id_x 1",
                ".end_amdhsa_kernel"]
    open(path, "w").write("\n".join(out) + "\n")
    print("hazards:", nh, "->", path)
if __name__ == "__main__":
    mods = sys.argv[2].split(",") if len(sys.argv) > 2 else ["k1", "k2", "k3"]
    build(mods, sys.argv[1] if len(sys.argv) > 1 else f"cdna_kernels/{NAME}.s")
```

```python
import re


class Emit:
    def __init__(self):
        self.lines = []

    def __call__(self, s=""):
        for l in s.split("\n"):
            l = l.strip()
            if l:
                self.lines.append(l)

    def label(self, name):
        self.lines.append(name + ":")

    def text(self):
        out = []
        for l in self.lines:
            if l.endswith(":") or l.startswith("."):
                out.append(l)
            else:
                out.append("    " + l)
        return "\n".join(out) + "\n"


def vr(a, n=1):
    return f"v{a}" if n == 1 else f"v[{a}:{a+n-1}]"


def ar(a, n=1):
    return f"a{a}" if n == 1 else f"a[{a}:{a+n-1}]"


def sr(a, n=1):
    return f"s{a}" if n == 1 else f"s[{a}:{a+n-1}]"


def weave(main, fill):
    out = list(fill.get(-1, []))
    for i, m in enumerate(main):
        out.append(m)
        out += fill.get(i, [])
    return out


_reg = re.compile(r"^(-|\|)?(v|a|s)(?:(\d+)|\[(\d+):(\d+)\])\|?$")


def regs_of(tok):
    tok = tok.strip()
    tok = re.sub(r"^abs\((.*)\)$", r"\1", tok)
    tok = re.sub(r"^neg\((.*)\)$", r"\1", tok)
    if tok in ("vcc", "vcc_lo", "vcc_hi"):
        return {("s", 106), ("s", 107)}
    if tok in ("exec", "exec_lo", "exec_hi"):
        return {("s", 126), ("s", 127)}
    if tok == "m0":
        return {("s", 124)}
    m = _reg.match(tok)
    if not m:
        return set()
    f = m.group(2)
    if m.group(3) is not None:
        return {(f, int(m.group(3)))}
    return {(f, i) for i in range(int(m.group(4)), int(m.group(5)) + 1)}


TRANS = ("v_exp_f32", "v_log_f32", "v_rcp_f32", "v_rsq_f32", "v_sqrt_f32", "v_sin_f32", "v_cos_f32")


class Ins:
    def __init__(self, line):
        self.line = line
        line = line.split(";")[0].strip()
        parts = line.split(None, 1)
        self.op = parts[0]
        rest = parts[1] if len(parts) > 1 else ""
        ops = [o.strip() for o in rest.split(",")] if rest else []
        self.mods = ""
        if ops:
            last = ops[-1].split(None, 1)
            if last:
                ops[-1] = last[0]
                self.mods = last[1] if len(last) > 1 else ""
        self.ops = ops
        op = self.op
        self.w = set()
        self.r = set()
        self.kind = "other"
        self.srcc = set()
        self.ab = set()
        self.passes = 0
        self.states = 1
        R = regs_of
        if op == "s_nop":
            self.states = int(ops[0], 0) + 1
            self.kind = "nop"
        elif op.startswith("v_mfma"):
            self.kind = "mfma"
            self.w = R(ops[0])
            self.ab = R(ops[1]) | R(ops[2])
            self.srcc = R(ops[3])
            self.r = self.ab | self.srcc
            self.passes = 8 if "32x32x16" in op else 4
        elif op.startswith("v_cmp"):
            self.kind = "valu"
            self.w = R(ops[0])
            for o in ops[1:]:
                self.r |= R(o)
            if op.startswith("v_cmpx"):
                self.w |= R("exec")
        elif op.startswith("v_readfirstlane") or op.startswith("v_readlane"):
            self.kind = "valu"
            self.w = R(ops[0])
            for o in ops[1:]:
                self.r |= R(o)
        elif op.startswith("v_permlane"):
            self.kind = "valu"
            self.w = R(ops[0]) | R(ops[1])
            self.r = R(ops[0]) | R(ops[1])
        elif op.startswith("v_"):
            self.kind = "valu"
            self.w = R(ops[0])
            start = 1
            if "_co_" in op or op.startswith("v_div_scale") or op.startswith("v_mad_u64"):
                self.w |= R(ops[1])
                start = 2
            for o in ops[start:]:
                self.r |= R(o)
            if op.startswith("v_fmac") or op.startswith("v_dot2c") or "dpp" in op or "row_" in self.mods or "quad_perm" in self.mods:
                self.r |= R(ops[0])
            if op.startswith("v_cndmask") and len(ops) == 3:
                self.r |= R("vcc")
        elif op.startswith("ds_read") or op.startswith("ds_bpermute") or op.startswith("ds_swizzle"):
            self.kind = "ds"
            self.w = R(ops[0])
            for o in ops[1:]:
                self.r |= R(o)
        elif op.startswith("ds_"):
            self.kind = "ds"
            for o in ops:
                self.r |= R(o)
        elif op.startswith("buffer_load") or op.startswith("global_load"):
            self.kind = "vmem"
            if "lds" in self.mods.split() or "_lds_" in op:
                for o in ops:
                    self.r |= R(o)
                self.r |= R("m0")
                self.lds_dma = True
            else:
                self.w = R(ops[0])
                for o in ops[1:]:
                    self.r |= R(o)
        elif op.startswith("buffer_store") or op.startswith("global_store") or op.startswith("buffer_atomic") or op.startswith("global_atomic"):
            self.kind = "vmem"
            for o in ops:
                self.r |= R(o)
            self.store_data = R(ops[0]) if op.startswith("buffer") else R(ops[1])
            self.wide = op.endswith("x3") or op.endswith("x4")
        elif op.startswith("s_"):
            self.kind = "salu"
            if op.startswith(("s_cmp", "s_cbranch", "s_branch", "s_waitcnt", "s_barrier", "s_endpgm", "s_setprio", "s_sleep", "s_bitcmp")):
                for o in ops:
                    self.r |= R(o)
            else:
                if ops:
                    self.w = R(ops[0])
                for o in ops[1:]:
                    self.r |= R(o)
                if "saveexec" in op:
                    self.w |= R("exec")
        self.dpp = "row_" in self.mods or "quad_perm" in self.mods or "_dpp" in op
        self.trans = op.replace("_e32", "").replace("_e64", "") in TRANS


def check_seq(seq, report):
    n = len(seq)
    for i, p in enumerate(seq):
        if p.kind in ("nop", "other"):
            continue
        dist = 0
        for j in range(i + 1, min(n, i + 24)):
            c = seq[j]
            need = 0
            vw = {r for r in p.w if r[0] in "va"}
            sw = {r for r in p.w if r[0] == "s"}
            if p.kind == "valu":
                if c.kind == "mfma" and vw & c.r:
                    need = max(need, 2)
                if c.kind == "valu" and c.dpp and vw & c.r:
                    need = max(need, 2)
                if c.op.startswith("v_permlane") and vw & c.r:
                    need = max(need, 2)
                if (c.op.startswith("v_readfirstlane") or c.op.startswith("v_readlane")) and vw & c.r:
                    need = max(need, 1)
                if p.trans and c.kind == "valu" and not c.trans and vw & c.r:
                    need = max(need, 1)
                if p.trans and c.kind in ("vmem", "ds") and vw & c.r:
                    need = max(need, 1)
                if sw & c.r:
                    if c.kind == "vmem":
                        need = max(need, 5)
                    elif c.kind == "valu":
                        need = max(need, 4 if c.op.startswith(("v_readlane", "v_writelane")) else 2)
                    elif c.kind == "salu":
                        need = max(need, 1)
                if ("s", 126) in sw:
                    if c.kind == "mfma":
                        need = max(need, 4)
                    if c.dpp:
                        need = max(need, 5)
            if p.kind == "salu":
                if ("s", 124) in sw and getattr(c, "lds_dma", False):
                    need = max(need, 1)
            if p.kind == "mfma":
                big = {4: 8, 8: 12}[p.passes]
                if c.kind == "mfma":
                    if p.w & c.ab:
                        need = max(need, big)
                    if p.w & c.srcc:
                        if not (p.w == c.srcc and p.passes == c.passes):
                            need = max(need, {4: 6, 8: 10}[p.passes])
                    elif p.w & c.w and not (p.w & c.srcc):
                        if p.passes != c.passes:
                            need = max(need, big)
                elif c.kind in ("valu", "vmem", "ds"):
                    if p.w & (c.r | c.w):
                        need = max(need, big)
                if c.kind == "valu" and p.srcc & c.w:
                    need = max(need, {4: 3, 8: 7}[p.passes])
            if p.kind == "vmem" and getattr(p, "wide", False):
                if p.store_data & c.w:
                    need = max(need, 2 if c.kind == "valu" else 1)
            if need > dist:
                report(f"hazard: need {need} have {dist}: [{p.line}] -> [{c.line}]")
            dist += c.states
            if dist >= 21:
                break


def check_text(text):
    lines = []
    labels = {}
    for l in text.split("\n"):
        l = l.split(";")[0].strip()
        if not l or l.startswith("."):
            continue
        if l.endswith(":"):
            labels[l[:-1]] = len(lines)
            continue
        lines.append(l)
    ins = [Ins(l) for l in lines]
    msgs = []
    check_seq(ins, msgs.append)
    for i, x in enumerate(ins):
        if x.op.startswith("s_cbranch") or x.op == "s_branch":
            t = labels.get(x.ops[0])
            if t is None:
                continue
            seq = ins[max(0, i - 24):i + 1] + ins[t:t + 24]
            m2 = []
            check_seq(seq, m2.append)
            for m in m2:
                if m not in msgs:
                    msgs.append("(edge) " + m)
    return msgs


import os
PROFILE = bool(os.environ.get("PROFILE"))
STAMP_S = 64
WS_PROF = 40 << 20

def stamp(e, idx):
    if not PROFILE:
        return
    b = STAMP_S + 4 * idx
    e(f"s_memtime s[{b}:{b+1}]")
    e(f"s_memrealtime s[{b+2}:{b+3}]")
    e("s_waitcnt lgkmcnt(0)")

def stamp_flush(e, kidx, n, srd, swave, v0, v1):
    if not PROFILE:
        return
    e("s_waitcnt vmcnt(0)")
    stamp(e, n - 1)
    e(f"s_lshl_b32 s96, s2, 2")
    e(f"s_add_u32 s96, s96, s{swave}")
    e(f"s_lshl_b32 s96, s96, 6")
    e(f"s_add_u32 s96, s96, {WS_PROF + kidx * 65536 * 2}")
    e(f"v_mov_b32 v{v0}, 0")
    e("s_mov_b64 exec, 1")
    for i in range(n):
        for q in range(2):
            e(f"v_mov_b32 v{v1}, s{STAMP_S+4*i+2*q}")
            e(f"buffer_store_dword v{v1}, v{v0}, s[{srd}:{srd+3}], s96 offen offset:{8*i+4*q}")
            e("s_waitcnt vmcnt(0)")
```

```python
import re


class Emit:
    def __init__(self):
        self.lines = []

    def __call__(self, s=""):
        for l in s.split("\n"):
            l = l.strip()
            if l:
                self.lines.append(l)

    def label(self, name):
        self.lines.append(name + ":")

    def text(self):
        out = []
        for l in self.lines:
            if l.endswith(":") or l.startswith("."):
                out.append(l)
            else:
                out.append("    " + l)
        return "\n".join(out) + "\n"


def vr(a, n=1):
    return f"v{a}" if n == 1 else f"v[{a}:{a+n-1}]"


def ar(a, n=1):
    return f"a{a}" if n == 1 else f"a[{a}:{a+n-1}]"


def sr(a, n=1):
    return f"s{a}" if n == 1 else f"s[{a}:{a+n-1}]"


def weave(main, fill):
    out = list(fill.get(-1, []))
    for i, m in enumerate(main):
        out.append(m)
        out += fill.get(i, [])
    return out


_reg = re.compile(r"^(-|\|)?(v|a|s)(?:(\d+)|\[(\d+):(\d+)\])\|?$")


def regs_of(tok):
    tok = tok.strip()
    tok = re.sub(r"^abs\((.*)\)$", r"\1", tok)
    tok = re.sub(r"^neg\((.*)\)$", r"\1", tok)
    if tok in ("vcc", "vcc_lo", "vcc_hi"):
        return {("s", 106), ("s", 107)}
    if tok in ("exec", "exec_lo", "exec_hi"):
        return {("s", 126), ("s", 127)}
    if tok == "m0":
        return {("s", 124)}
    m = _reg.match(tok)
    if not m:
        return set()
    f = m.group(2)
    if m.group(3) is not None:
        return {(f, int(m.group(3)))}
    return {(f, i) for i in range(int(m.group(4)), int(m.group(5)) + 1)}


TRANS = ("v_exp_f32", "v_log_f32", "v_rcp_f32", "v_rsq_f32", "v_sqrt_f32", "v_sin_f32", "v_cos_f32")


class Ins:
    def __init__(self, line):
        self.line = line
        line = line.split(";")[0].strip()
        line = re.sub(r"\s+(op_sel|op_sel_hi|neg_lo|neg_hi):\[[^\]]*\]", "", line)
        parts = line.split(None, 1)
        self.op = parts[0]
        rest = parts[1] if len(parts) > 1 else ""
        ops = [o.strip() for o in rest.split(",")] if rest else []
        self.mods = ""
        if ops:
            last = ops[-1].split(None, 1)
            if last:
                ops[-1] = last[0]
                self.mods = last[1] if len(last) > 1 else ""
        self.ops = ops
        op = self.op
        self.w = set()
        self.r = set()
        self.kind = "other"
        self.srcc = set()
        self.ab = set()
        self.passes = 0
        self.states = 1
        R = regs_of
        if op == "s_nop":
            self.states = int(ops[0], 0) + 1
            self.kind = "nop"
        elif op.startswith("v_mfma"):
            self.kind = "mfma"
            self.w = R(ops[0])
            self.ab = R(ops[1]) | R(ops[2])
            self.srcc = R(ops[3])
            self.r = self.ab | self.srcc
            self.passes = 8 if "32x32x16" in op else 4
        elif op.startswith("v_cmp"):
            self.kind = "valu"
            self.w = R(ops[0])
            for o in ops[1:]:
                self.r |= R(o)
            if op.startswith("v_cmpx"):
                self.w |= R("exec")
        elif op.startswith("v_readfirstlane") or op.startswith("v_readlane"):
            self.kind = "valu"
            self.w = R(ops[0])
            for o in ops[1:]:
                self.r |= R(o)
        elif op.startswith("v_permlane"):
            self.kind = "valu"
            self.w = R(ops[0]) | R(ops[1])
            self.r = R(ops[0]) | R(ops[1])
        elif op.startswith("v_"):
            self.kind = "valu"
            self.w = R(ops[0])
            start = 1
            if "_co_" in op or op.startswith("v_div_scale") or op.startswith("v_mad_u64"):
                self.w |= R(ops[1])
                start = 2
            for o in ops[start:]:
                self.r |= R(o)
            if op.startswith("v_fmac") or op.startswith("v_dot2c") or "dpp" in op or "row_" in self.mods or "quad_perm" in self.mods:
                self.r |= R(ops[0])
            if op.startswith("v_cndmask") and len(ops) == 3:
                self.r |= R("vcc")
        elif op.startswith("ds_read") or op.startswith("ds_bpermute") or op.startswith("ds_swizzle"):
            self.kind = "ds"
            self.w = R(ops[0])
            for o in ops[1:]:
                self.r |= R(o)
        elif op.startswith("ds_"):
            self.kind = "ds"
            for o in ops:
                self.r |= R(o)
        elif op.startswith("buffer_load") or op.startswith("global_load"):
            self.kind = "vmem"
            if "lds" in self.mods.split() or "_lds_" in op:
                for o in ops:
                    self.r |= R(o)
                self.r |= R("m0")
                self.lds_dma = True
            else:
                self.w = R(ops[0])
                for o in ops[1:]:
                    self.r |= R(o)
        elif op.startswith("buffer_store") or op.startswith("global_store") or op.startswith("buffer_atomic") or op.startswith("global_atomic"):
            self.kind = "vmem"
            for o in ops:
                self.r |= R(o)
            self.store_data = R(ops[0]) if op.startswith("buffer") else R(ops[1])
            self.wide = op.endswith("x3") or op.endswith("x4")
        elif op.startswith("s_"):
            self.kind = "salu"
            if op.startswith(("s_cmp", "s_cbranch", "s_branch", "s_waitcnt", "s_barrier", "s_endpgm", "s_setprio", "s_sleep", "s_bitcmp")):
                for o in ops:
                    self.r |= R(o)
            else:
                if ops:
                    self.w = R(ops[0])
                for o in ops[1:]:
                    self.r |= R(o)
                if "saveexec" in op:
                    self.w |= R("exec")
        self.dpp = "row_" in self.mods or "quad_perm" in self.mods or "_dpp" in op
        self.trans = op.replace("_e32", "").replace("_e64", "") in TRANS


def check_seq(seq, report):
    n = len(seq)
    for i, p in enumerate(seq):
        if p.kind in ("nop", "other"):
            continue
        dist = 0
        for j in range(i + 1, min(n, i + 24)):
            c = seq[j]
            need = 0
            vw = {r for r in p.w if r[0] in "va"}
            sw = {r for r in p.w if r[0] == "s"}
            if p.kind == "valu":
                if c.kind == "mfma" and vw & c.r:
                    need = max(need, 2)
                if c.kind == "valu" and c.dpp and vw & c.r:
                    need = max(need, 2)
                if c.op.startswith("v_permlane") and vw & c.r:
                    need = max(need, 2)
                if (c.op.startswith("v_readfirstlane") or c.op.startswith("v_readlane")) and vw & c.r:
                    need = max(need, 1)
                if p.trans and c.kind == "valu" and not c.trans and vw & c.r:
                    need = max(need, 1)
                if p.trans and c.kind in ("vmem", "ds") and vw & c.r:
                    need = max(need, 1)
                if sw & c.r:
                    if c.kind == "vmem":
                        need = max(need, 5)
                    elif c.kind == "valu":
                        need = max(need, 4 if c.op.startswith(("v_readlane", "v_writelane")) else 2)
                    elif c.kind == "salu":
                        need = max(need, 1)
                if ("s", 126) in sw:
                    if c.kind == "mfma":
                        need = max(need, 4)
                    if c.dpp:
                        need = max(need, 5)
            if p.kind == "salu":
                if ("s", 124) in sw and getattr(c, "lds_dma", False):
                    need = max(need, 1)
            if p.kind == "mfma":
                big = {4: 8, 8: 12}[p.passes]
                if c.kind == "mfma":
                    if p.w & c.ab:
                        need = max(need, big)
                    if p.w & c.srcc:
                        if not (p.w == c.srcc and p.passes == c.passes):
                            need = max(need, {4: 6, 8: 10}[p.passes])
                    elif p.w & c.w and not (p.w & c.srcc):
                        if p.passes != c.passes:
                            need = max(need, big)
                elif c.kind in ("valu", "vmem", "ds"):
                    if p.w & (c.r | c.w):
                        need = max(need, big)
                if c.kind == "valu" and p.srcc & c.w:
                    need = max(need, {4: 3, 8: 7}[p.passes])
            if p.kind == "vmem" and getattr(p, "wide", False):
                if p.store_data & c.w:
                    need = max(need, 2 if c.kind == "valu" else 1)
            if need > dist:
                report(f"hazard: need {need} have {dist}: [{p.line}] -> [{c.line}]")
            dist += c.states
            if dist >= 21:
                break


def check_text(text):
    lines = []
    labels = {}
    for l in text.split("\n"):
        l = l.split(";")[0].strip()
        if not l or l.startswith("."):
            continue
        if l.endswith(":"):
            labels[l[:-1]] = len(lines)
            continue
        lines.append(l)
    ins = [Ins(l) for l in lines]
    msgs = []
    check_seq(ins, msgs.append)
    for i, x in enumerate(ins):
        if x.op.startswith("s_cbranch") or x.op == "s_branch":
            t = labels.get(x.ops[0])
            if t is None:
                continue
            seq = ins[max(0, i - 24):i + 1] + ins[t:t + 24]
            m2 = []
            check_seq(seq, m2.append)
            for m in m2:
                if m not in msgs:
                    msgs.append("(edge) " + m)
    return msgs


import os
PROFILE = bool(os.environ.get("PROFILE"))
STAMP_S = 64
WS_PROF = 40 << 20

def stamp(e, idx):
    if not PROFILE:
        return
    b = STAMP_S + 4 * idx
    e(f"s_memtime s[{b}:{b+1}]")
    e(f"s_memrealtime s[{b+2}:{b+3}]")
    e("s_waitcnt lgkmcnt(0)")

def stamp_flush(e, kidx, n, srd, swave, v0, v1):
    if not PROFILE:
        return
    e("s_waitcnt vmcnt(0)")
    stamp(e, n - 1)
    e(f"s_lshl_b32 s96, s2, 2")
    e(f"s_add_u32 s96, s96, s{swave}")
    e(f"s_lshl_b32 s96, s96, 6")
    e(f"s_add_u32 s96, s96, {WS_PROF + kidx * 65536 * 2}")
    e(f"v_mov_b32 v{v0}, 0")
    e("s_mov_b64 exec, 1")
    for i in range(n):
        for q in range(2):
            e(f"v_mov_b32 v{v1}, s{STAMP_S+4*i+2*q}")
            e(f"buffer_store_dword v{v1}, v{v0}, s[{srd}:{srd+3}], s96 offen offset:{8*i+4*q}")
            e("s_waitcnt vmcnt(0)")


class Item:
    def __init__(self, text=None, vm=None, lg=None, need_vm=(), need_lg=(), key=None):
        self.text, self.vm, self.lg = text, vm, lg
        self.need_vm, self.need_lg = list(need_vm), list(need_lg)
        self.key = key

def I(text):
    return Item(text)

def VM(text, tag=""):
    return Item(text, vm=tag)

def LG(text, tag=""):
    return Item(text, lg=tag)

def WAIT(vm=(), lg=()):
    return Item(None, need_vm=vm, need_lg=lg)

def resolve(segments):
    vm_seq, lg_seq = [], []
    vm_done, lg_done = 0, 0
    req = {}
    for name, insts in segments:
        for inst in insts:
            assert len(inst) == len(insts[0])
            for pos, it in enumerate(inst):
                assert it.text == insts[0][pos].text, (it.text, insts[0][pos].text)
                if it.text is None:
                    nv = nl = None
                    for t in it.need_vm:
                        idx = max(i for i, x in enumerate(vm_seq) if x == t)
                        n = len(vm_seq) - 1 - idx
                        nv = n if nv is None else min(nv, n)
                    for t in it.need_lg:
                        c = [i for i, x in enumerate(lg_seq) if x == t]
                        if not c:
                            continue
                        n = len(lg_seq) - 1 - max(c)
                        nl = n if nl is None else min(nl, n)
                    k = (name, pos)
                    ov, ol = req.get(k, (None, None))
                    if nv is not None:
                        ov = nv if ov is None else min(ov, nv)
                    if nl is not None:
                        ol = nl if ol is None else min(ol, nl)
                    req[k] = (ov, ol)
                else:
                    if it.vm is not None:
                        vm_seq.append(it.vm)
                    if it.lg is not None:
                        lg_seq.append(it.lg)
    out = {}
    for name, insts in segments:
        lines = []
        for pos, it in enumerate(insts[0]):
            if it.text is None:
                nv, nl = req[(name, pos)]
                parts = []
                if nv is not None:
                    parts.append(f"vmcnt({min(nv,63)})")
                if nl is not None:
                    parts.append(f"lgkmcnt({min(nl,15)})")
                if parts:
                    lines.append("s_waitcnt " + " ".join(parts))
            else:
                lines.append(it.text)
        out[name] = lines
    return out
```

```python
import re


class Emit:
    def __init__(self):
        self.lines = []

    def __call__(self, s=""):
        for l in s.split("\n"):
            l = l.strip()
            if l:
                self.lines.append(l)

    def label(self, name):
        self.lines.append(name + ":")

    def text(self):
        out = []
        for l in self.lines:
            if l.endswith(":") or l.startswith("."):
                out.append(l)
            else:
                out.append("    " + l)
        return "\n".join(out) + "\n"


def vr(a, n=1):
    return f"v{a}" if n == 1 else f"v[{a}:{a+n-1}]"


def ar(a, n=1):
    return f"a{a}" if n == 1 else f"a[{a}:{a+n-1}]"


def sr(a, n=1):
    return f"s{a}" if n == 1 else f"s[{a}:{a+n-1}]"


def weave(main, fill):
    out = list(fill.get(-1, []))
    for i, m in enumerate(main):
        out.append(m)
        out += fill.get(i, [])
    return out


_reg = re.compile(r"^(-|\|)?(v|a|s)(?:(\d+)|\[(\d+):(\d+)\])\|?$")


def regs_of(tok):
    tok = tok.strip()
    tok = re.sub(r"^abs\((.*)\)$", r"\1", tok)
    tok = re.sub(r"^neg\((.*)\)$", r"\1", tok)
    if tok in ("vcc", "vcc_lo", "vcc_hi"):
        return {("s", 106), ("s", 107)}
    if tok in ("exec", "exec_lo", "exec_hi"):
        return {("s", 126), ("s", 127)}
    if tok == "m0":
        return {("s", 124)}
    m = _reg.match(tok)
    if not m:
        return set()
    f = m.group(2)
    if m.group(3) is not None:
        return {(f, int(m.group(3)))}
    return {(f, i) for i in range(int(m.group(4)), int(m.group(5)) + 1)}


TRANS = ("v_exp_f32", "v_log_f32", "v_rcp_f32", "v_rsq_f32", "v_sqrt_f32", "v_sin_f32", "v_cos_f32")


class Ins:
    def __init__(self, line):
        self.line = line
        line = line.split(";")[0].strip()
        line = re.sub(r"\s+(op_sel|op_sel_hi|neg_lo|neg_hi):\[[^\]]*\]", "", line)
        parts = line.split(None, 1)
        self.op = parts[0]
        rest = parts[1] if len(parts) > 1 else ""
        ops = [o.strip() for o in rest.split(",")] if rest else []
        self.mods = ""
        if ops:
            last = ops[-1].split(None, 1)
            if last:
                ops[-1] = last[0]
                self.mods = last[1] if len(last) > 1 else ""
        self.ops = ops
        op = self.op
        self.w = set()
        self.r = set()
        self.kind = "other"
        self.srcc = set()
        self.ab = set()
        self.passes = 0
        self.states = 1
        R = regs_of
        if op == "s_nop":
            self.states = int(ops[0], 0) + 1
            self.kind = "nop"
        elif op.startswith("v_mfma"):
            self.kind = "mfma"
            self.w = R(ops[0])
            self.ab = R(ops[1]) | R(ops[2])
            self.srcc = R(ops[3])
            self.r = self.ab | self.srcc
            self.passes = 8 if "32x32x16" in op else 4
        elif op.startswith("v_cmp"):
            self.kind = "valu"
            self.w = R(ops[0])
            for o in ops[1:]:
                self.r |= R(o)
            if op.startswith("v_cmpx"):
                self.w |= R("exec")
        elif op.startswith("v_readfirstlane") or op.startswith("v_readlane"):
            self.kind = "valu"
            self.w = R(ops[0])
            for o in ops[1:]:
                self.r |= R(o)
        elif op.startswith("v_permlane"):
            self.kind = "valu"
            self.w = R(ops[0]) | R(ops[1])
            self.r = R(ops[0]) | R(ops[1])
        elif op.startswith("v_"):
            self.kind = "valu"
            self.w = R(ops[0])
            start = 1
            if "_co_" in op or op.startswith("v_div_scale") or op.startswith("v_mad_u64"):
                self.w |= R(ops[1])
                start = 2
            for o in ops[start:]:
                self.r |= R(o)
            if op.startswith("v_fmac") or op.startswith("v_dot2c") or "dpp" in op or "row_" in self.mods or "quad_perm" in self.mods:
                self.r |= R(ops[0])
            if op.startswith("v_cndmask") and len(ops) == 3:
                self.r |= R("vcc")
        elif op.startswith("ds_read") or op.startswith("ds_bpermute") or op.startswith("ds_swizzle"):
            self.kind = "ds"
            self.w = R(ops[0])
            for o in ops[1:]:
                self.r |= R(o)
        elif op.startswith("ds_"):
            self.kind = "ds"
            for o in ops:
                self.r |= R(o)
        elif op.startswith("buffer_load") or op.startswith("global_load"):
            self.kind = "vmem"
            if "lds" in self.mods.split() or "_lds_" in op:
                for o in ops:
                    self.r |= R(o)
                self.r |= R("m0")
                self.lds_dma = True
            else:
                self.w = R(ops[0])
                for o in ops[1:]:
                    self.r |= R(o)
        elif op.startswith("buffer_store") or op.startswith("global_store") or op.startswith("buffer_atomic") or op.startswith("global_atomic"):
            self.kind = "vmem"
            for o in ops:
                self.r |= R(o)
            self.store_data = R(ops[0]) if op.startswith("buffer") else R(ops[1])
            self.wide = op.endswith("x3") or op.endswith("x4")
        elif op.startswith("s_"):
            self.kind = "salu"
            if op.startswith(("s_cmp", "s_cbranch", "s_branch", "s_waitcnt", "s_barrier", "s_endpgm", "s_setprio", "s_sleep", "s_bitcmp")):
                for o in ops:
                    self.r |= R(o)
            else:
                if ops:
                    self.w = R(ops[0])
                for o in ops[1:]:
                    self.r |= R(o)
                if "saveexec" in op:
                    self.w |= R("exec")
        self.dpp = "row_" in self.mods or "quad_perm" in self.mods or "_dpp" in op
        self.trans = op.replace("_e32", "").replace("_e64", "") in TRANS


def check_seq(seq, report):
    n = len(seq)
    for i, p in enumerate(seq):
        if p.kind in ("nop", "other"):
            continue
        dist = 0
        for j in range(i + 1, min(n, i + 24)):
            c = seq[j]
            need = 0
            vw = {r for r in p.w if r[0] in "va"}
            sw = {r for r in p.w if r[0] == "s"}
            if p.kind == "valu":
                if c.kind == "mfma" and vw & c.r:
                    need = max(need, 2)
                if c.kind == "valu" and c.dpp and vw & c.r:
                    need = max(need, 2)
                if c.op.startswith("v_permlane") and vw & c.r:
                    need = max(need, 2)
                if (c.op.startswith("v_readfirstlane") or c.op.startswith("v_readlane")) and vw & c.r:
                    need = max(need, 1)
                if p.trans and c.kind == "valu" and not c.trans and vw & c.r:
                    need = max(need, 1)
                if p.trans and c.kind in ("vmem", "ds") and vw & c.r:
                    need = max(need, 1)
                if sw & c.r:
                    if c.kind == "vmem":
                        need = max(need, 5)
                    elif c.kind == "valu":
                        need = max(need, 4 if c.op.startswith(("v_readlane", "v_writelane")) else 2)
                    elif c.kind == "salu":
                        need = max(need, 1)
                if ("s", 126) in sw:
                    if c.kind == "mfma":
                        need = max(need, 4)
                    if c.dpp:
                        need = max(need, 5)
            if p.kind == "salu":
                if ("s", 124) in sw and getattr(c, "lds_dma", False):
                    need = max(need, 1)
            if p.kind == "mfma":
                big = {4: 8, 8: 12}[p.passes]
                if c.kind == "mfma":
                    if p.w & c.ab:
                        need = max(need, big)
                    if p.w & c.srcc:
                        if not (p.w == c.srcc and p.passes == c.passes):
                            need = max(need, {4: 6, 8: 10}[p.passes])
                    elif p.w & c.w and not (p.w & c.srcc):
                        if p.passes != c.passes:
                            need = max(need, big)
                elif c.kind in ("valu", "vmem", "ds"):
                    if p.w & (c.r | c.w):
                        need = max(need, big)
                if c.kind == "valu" and p.srcc & c.w:
                    need = max(need, {4: 3, 8: 7}[p.passes])
            if p.kind == "vmem" and getattr(p, "wide", False):
                if p.store_data & c.w:
                    need = max(need, 2 if c.kind == "valu" else 1)
            if need > dist:
                report(f"hazard: need {need} have {dist}: [{p.line}] -> [{c.line}]")
            dist += c.states
            if dist >= 21:
                break


def check_text(text):
    lines = []
    labels = {}
    for l in text.split("\n"):
        l = l.split(";")[0].strip()
        if not l or l.startswith("."):
            continue
        if l.endswith(":"):
            labels[l[:-1]] = len(lines)
            continue
        lines.append(l)
    ins = [Ins(l) for l in lines]
    msgs = []
    check_seq(ins, msgs.append)
    for i, x in enumerate(ins):
        if x.op.startswith("s_cbranch") or x.op == "s_branch":
            t = labels.get(x.ops[0])
            if t is None:
                continue
            seq = ins[max(0, i - 24):i + 1] + ins[t:t + 24]
            m2 = []
            check_seq(seq, m2.append)
            for m in m2:
                if m not in msgs:
                    msgs.append("(edge) " + m)
    return msgs


import os
PROFILE = bool(os.environ.get("PROFILE"))
WS_PROF = 40 << 20
VSTAMP = 255

def stamp_init(e):
    if PROFILE:
        e(f"v_mov_b32 v{VSTAMP}, 0")

def stamp(e, idx):
    if not PROFILE:
        return
    e("s_memtime s[96:97]")
    e("s_memrealtime s[98:99]")
    e("s_waitcnt lgkmcnt(0)")
    e(f"v_writelane_b32 v{VSTAMP}, s96, {2*idx}")
    e(f"v_writelane_b32 v{VSTAMP}, s98, {2*idx+1}")

def stamp_dyn(e, scnt, top):
    if not (PROFILE and os.environ.get("ITSTAMP")):
        return
    e("s_memtime s[96:97]")
    e("s_memrealtime s[98:99]")
    e("s_waitcnt lgkmcnt(0)")
    e(f"s_sub_u32 s97, {top}, s{scnt}")
    e("s_lshl_b32 m0, s97, 1")
    e("s_nop 0")
    e(f"v_writelane_b32 v{VSTAMP}, s96, m0")
    e("s_add_u32 m0, m0, 1")
    e("s_nop 0")
    e(f"v_writelane_b32 v{VSTAMP}, s98, m0")

def stamp_flush(e, kidx, n, srd, swave, v0, v1):
    if not PROFILE:
        return
    e("s_waitcnt vmcnt(0)")
    stamp(e, n - 1)
    e(f"s_lshl_b32 s96, s2, 2")
    e(f"s_add_u32 s96, s96, s{swave}")
    e(f"s_lshl_b32 s96, s96, 8")
    e(f"s_add_u32 s96, s96, {WS_PROF + kidx * 262144}")
    e(f"v_mbcnt_lo_u32_b32 v{v0}, -1, 0")
    e(f"v_mbcnt_hi_u32_b32 v{v0}, -1, v{v0}")
    e(f"v_lshlrev_b32 v{v0}, 2, v{v0}")
    e(f"buffer_store_dword v{VSTAMP}, v{v0}, s[{srd}:{srd+3}], s96 offen")
    e("s_waitcnt vmcnt(0)")


class Item:
    def __init__(self, text=None, vm=None, lg=None, need_vm=(), need_lg=(), key=None):
        self.text, self.vm, self.lg = text, vm, lg
        self.need_vm, self.need_lg = list(need_vm), list(need_lg)
        self.key = key

def I(text):
    return Item(text)

def VM(text, tag=""):
    return Item(text, vm=tag)

def LG(text, tag=""):
    return Item(text, lg=tag)

def WAIT(vm=(), lg=()):
    return Item(None, need_vm=vm, need_lg=lg)

def resolve(segments):
    vm_seq, lg_seq = [], []
    vm_done, lg_done = 0, 0
    req = {}
    for name, insts in segments:
        for inst in insts:
            assert len(inst) == len(insts[0])
            for pos, it in enumerate(inst):
                assert it.text == insts[0][pos].text, (it.text, insts[0][pos].text)
                if it.text is None:
                    nv = nl = None
                    for t in it.need_vm:
                        idx = max(i for i, x in enumerate(vm_seq) if x == t)
                        n = len(vm_seq) - 1 - idx
                        nv = n if nv is None else min(nv, n)
                    for t in it.need_lg:
                        c = [i for i, x in enumerate(lg_seq) if x == t]
                        if not c:
                            continue
                        n = len(lg_seq) - 1 - max(c)
                        nl = n if nl is None else min(nl, n)
                    k = (name, pos)
                    ov, ol = req.get(k, (None, None))
                    if nv is not None:
                        ov = nv if ov is None else min(ov, nv)
                    if nl is not None:
                        ol = nl if ol is None else min(ol, nl)
                    req[k] = (ov, ol)
                else:
                    if it.vm is not None:
                        vm_seq.append(it.vm)
                    if it.lg is not None:
                        lg_seq.append(it.lg)
    out = {}
    for name, insts in segments:
        lines = []
        for pos, it in enumerate(insts[0]):
            if it.text is None:
                nv, nl = req[(name, pos)]
                parts = []
                if nv is not None:
                    parts.append(f"vmcnt({min(nv,63)})")
                if nl is not None:
                    parts.append(f"lgkmcnt({min(nl,15)})")
                if parts:
                    lines.append("s_waitcnt " + " ".join(parts))
            else:
                lines.append(it.text)
        out[name] = lines
    return out


def resolve_min(alts):
    rs = [resolve(a) for a in alts]
    out = {}
    for k in rs[0]:
        if k == "hist":
            continue
        lines = []
        for tup in zip(*[r[k] for r in rs]):
            if len(set(tup)) == 1:
                lines.append(tup[0])
                continue
            parts = []
            for nm in ("vmcnt", "lgkmcnt"):
                v = [int(m.group(1)) for t in tup for m in [re.search(nm + r"\((\d+)\)", t)] if m]
                if v:
                    parts.append(f"{nm}({min(v)})")
            assert all(t.startswith("s_waitcnt") for t in tup), tup
            lines.append("s_waitcnt " + " ".join(parts))
        out[k] = lines
    return out
```

```python
import sys, importlib
sys.path.insert(0, "work")
from asmlib import check_text, PROFILE
NAME = "gated_mix__softmax_full_mha__glu_gated_geglu__prompt"
def build(mods, path):
    ref = open(f"cdna_kernels/{NAME}.s.ref").read().split("\n")
    head = [l for l in ref if l.startswith(";") and "@launch" not in l and "Override launch" not in l and "grid=ceil" not in l]
    ks = [importlib.import_module(m).gen() for m in mods]
    out = list(head)
    for t, d in ks:
        if d.get("single"):
            out.append(f"; @launch grid=({d['grid']},1,1) block=({d['block']},1,1) lds={d['lds']}")
            continue
        out.append(f"; @launch kernel={d['name']} grid=({d['grid']},1,1) block=({d['block']},1,1) lds={d['lds']}")
    out.append('.amdgcn_target "amdgcn-amd-amdhsa--gfx950"')
    nh = 0
    for t, d in ks:
        msgs = check_text(t)
        for m in msgs[:40]:
            print(d["name"], m)
        nh += len(msgs)
        out += [".text", f".globl {d['name']}", ".p2align 8", f".type {d['name']},@function", f"{d['name']}:", t]
    out += ["code_end:", "    s_endpgm", '.section .rodata,"a"']
    for t, d in ks:
        if PROFILE: d["vgpr"] = 256
        acc = (d["vgpr"] + 3) // 4 * 4
        nfv = acc + d["agpr"] if d["agpr"] else d["vgpr"]
        out += [".p2align 6", f".amdhsa_kernel {d['name']}", f"  .amdhsa_next_free_vgpr {nfv}",
                f"  .amdhsa_next_free_sgpr {d['sgpr']}", f"  .amdhsa_accum_offset {acc}",
                "  .amdhsa_group_segment_fixed_size 0", "  .amdhsa_kernarg_size 88", "  .amdhsa_user_sgpr_count 2",
                "  .amdhsa_user_sgpr_kernarg_segment_ptr 1", "  .amdhsa_system_sgpr_workgroup_id_x 1",
                ".end_amdhsa_kernel"]
    open(path, "w").write("\n".join(out) + "\n")
    print("hazards:", nh, "->", path)
if __name__ == "__main__":
    mods = sys.argv[2].split(",") if len(sys.argv) > 2 else ["k1", "k2", "k3"]
    build(mods, sys.argv[1] if len(sys.argv) > 1 else f"cdna_kernels/{NAME}.s")
```

```python
import sys, os, importlib
sys.path.insert(0, "work")
from asmlib import check_text, PROFILE
NAME = "gated_mix__softmax_full_mha__glu_gated_geglu__prompt"
def build(mods, path):
    ref = open(f"cdna_kernels/{NAME}.s.ref").read().split("\n")
    head = [l for l in ref if l.startswith(";") and "@launch" not in l and "Override launch" not in l and "grid=ceil" not in l]
    ks = [importlib.import_module(m).gen() for m in mods]
    out = list(head)
    for t, d in ks:
        if d.get("single"):
            out.append(f"; @launch grid=({d['grid']},1,1) block=({d['block']},1,1) lds={d['lds']}")
            continue
        out.append(f"; @launch kernel={d['name']} grid=({d['grid']},1,1) block=({d['block']},1,1) lds={d['lds']}")
    out.append('.amdgcn_target "amdgcn-amd-amdhsa--gfx950"')
    nh = 0
    for t, d in ks:
        pol = os.environ.get("LDPOL")
        if pol:
            import re
            t = re.sub(r"(buffer_load_dwordx4 v\d+, s\[\d+:\d+\], s\d+ offen(?: offset:\d+)?) lds", r"\1 " + pol + " lds", t)
        pol = os.environ.get("LAPOL")
        if pol:
            import re
            t = re.sub(r"(buffer_load_dwordx4 a\[\d+:\d+\], v\d+, s\[\d+:\d+\], s\d+ offen(?: offset:\d+)?)\n", r"\1 " + pol + "\n", t)
        msgs = check_text(t)
        for m in msgs[:40]:
            print(d["name"], m)
        nh += len(msgs)
        out += [".text", f".globl {d['name']}", ".p2align 8", f".type {d['name']},@function", f"{d['name']}:", t]
    out += ["code_end:", "    s_endpgm", '.section .rodata,"a"']
    for t, d in ks:
        if PROFILE: d["vgpr"] = 256
        acc = (d["vgpr"] + 3) // 4 * 4
        nfv = acc + d["agpr"] if d["agpr"] else d["vgpr"]
        out += [".p2align 6", f".amdhsa_kernel {d['name']}", f"  .amdhsa_next_free_vgpr {nfv}",
                f"  .amdhsa_next_free_sgpr {d['sgpr']}", f"  .amdhsa_accum_offset {acc}",
                "  .amdhsa_group_segment_fixed_size 0", "  .amdhsa_kernarg_size 88", "  .amdhsa_user_sgpr_count 2",
                "  .amdhsa_user_sgpr_kernarg_segment_ptr 1", "  .amdhsa_system_sgpr_workgroup_id_x 1",
                ".end_amdhsa_kernel"]
    open(path, "w").write("\n".join(out) + "\n")
    print("hazards:", nh, "->", path)
if __name__ == "__main__":
    mods = sys.argv[2].split(",") if len(sys.argv) > 2 else ["k1", "k2", "k3"]
    build(mods, sys.argv[1] if len(sys.argv) > 1 else f"cdna_kernels/{NAME}.s")
```
